```python
import torch

def _softmax(x, axis=-1):
    return torch.softmax(x, dim=axis)
def _gelu(x):
    return torch.nn.functional.gelu(x, approximate="tanh")
def _silu(x):
    return torch.nn.functional.silu(x)
def _sigmoid(x):
    return torch.sigmoid(x)
def _layernorm(x, axis=-1, eps=1e-5):
    m = x.mean(dim=axis, keepdim=True)
    v = x.var(dim=axis, keepdim=True, unbiased=False)
    return (x - m) / torch.sqrt(v + eps)
def _scatter_add(tgt, idx, src, axis=0):
    return tgt.clone().index_add_(axis, idx, src)
def _segment_sum(src, seg, n):
    out = torch.zeros((n,) + src.shape[1:], dtype=src.dtype)
    return out.index_add_(0, seg, src)
def _pad(x, pw):
    flat = tuple(v for pair in reversed(pw) for v in pair)
    return torch.nn.functional.pad(x, flat)

kernel_name = 'standalone__gqa_softmax__near_ridge'

def setup_inputs():

    _w = (lambda a: (lambda t: t.to(torch.bfloat16) if t.is_floating_point() else t)(torch.as_tensor(a)))
    B, Hq, Hkv, Sq, Sk, D = 16, 32, 32, 368, 512, 192
    return {
        "q": _w((lambda *s: torch.randn(*s, dtype=torch.bfloat16) * 0.8)(B, Hq, Sq, D)),
        "k": _w((lambda *s: torch.randn(*s, dtype=torch.bfloat16) * 0.8)(B, Hkv, Sk, D)),
        "v": _w((lambda *s: torch.randn(*s, dtype=torch.bfloat16) * 0.05)(B, Hkv, Sk, D)),
    }

def reference(q, k, v):
    B, Hq, Sq, D = q.shape
    Hkv = k.shape[1]
    rep = Hq // Hkv
    k = (lambda x, n, axis: torch.repeat_interleave(x, n, dim=axis))(k, rep, axis=1)
    v = (lambda x, n, axis: torch.repeat_interleave(x, n, dim=axis))(v, rep, axis=1)
    scale = D ** -0.5
    scores = torch.einsum("bhqd,bhkd->bhqk", q, k) * scale
    p = _softmax(scores, axis=-1)
    return torch.einsum("bhqk,bhkd->bhqd", p, v)
```

```python
import re


def vr(lo, n=1):
    return f"v{lo}" if n == 1 else f"v[{lo}:{lo + n - 1}]"


def rng(lo, n):
    return set(range(lo, lo + n))


class Em:
    def __init__(self):
        self.lines = []
        self.hist = []
        self.ldsq = []
        self.nops = 0

    def raw(self, text):
        self.lines.append(text)

    def comment(self, text):
        self.lines.append(f"    ; {text}")

    def label(self, name, keep_hist=False):
        self.lines.append(f"{name}:")
        if not keep_hist:
            self.hist = []

    def _need(self, cur):
        need = 0
        dist = 0
        for prev in reversed(self.hist):
            if dist >= 20:
                break
            req = 0
            pk, ck = prev["kind"], cur["kind"]
            pvalu = pk in ("valu", "trans", "permlane")
            cvalu = ck in ("valu", "trans", "permlane", "rfl")
            cmem = ck in ("ds_read", "ds_write", "vload", "vstore", "dma")
            if pvalu and ck == "mfma" and prev["wr"] & cur["rd"]:
                req = max(req, 2)
            if pk == "mfma":
                np_ = prev["passes"]
                big = {4: 8, 8: 12}[np_]
                if cvalu and prev["wr"] & (cur["rd"] | cur["wr"]):
                    req = max(req, big)
                if cmem and prev["wr"] & (cur["rd"] | cur["wr"]):
                    req = max(req, big)
                if ck == "mfma":
                    if prev["wr"] & cur["ab"]:
                        req = max(req, big)
                    if prev["wr"] & cur["srcc"] and prev["wr"] != cur["srcc"]:
                        req = max(req, {4: 6, 8: 10}[np_])
                if cvalu and prev["srcc"] & cur["wr"]:
                    req = max(req, {4: 3, 8: 7}[np_])
            if pk == "trans" and ck in ("valu", "permlane", "rfl") and prev["wr"] & cur["rd"]:
                req = max(req, 1)
            if pvalu and ck == "permlane" and prev["wr"] & cur["rd"]:
                req = max(req, 2)
            if pvalu and ck == "rfl" and prev["wr"] & cur["rd"]:
                req = max(req, 1)
            if pk == "salu" and "m0" in prev["swr"] and ck == "dma":
                req = max(req, 1)
            if pk == "vstore" and cur["wr"] & prev["data"]:
                req = max(req, 2)
            if pk in ("valu", "rfl") and prev["swr"]:
                if cmem and prev["swr"] & cur["srd"]:
                    req = max(req, 5)
                if cvalu and prev["swr"] & cur["srd"]:
                    req = max(req, 2)
                if ck == "salu" and prev["swr"] & cur["srd"]:
                    req = max(req, 2)
            need = max(need, req - dist)
            dist += prev["states"]
        return need

    def ins(self, text, kind, wr=(), rd=(), srcc=(), ab=(), swr=(), srd=(), data=(), passes=4, states=1):
        cur = dict(kind=kind, wr=set(wr), rd=set(rd), srcc=set(srcc), ab=set(ab), swr=set(swr),
                   srd=set(srd), data=set(data), passes=passes, states=states)
        n = self._need(cur)
        while n > 0:
            k = min(n, 16)
            self.lines.append(f"    s_nop {k - 1}")
            self.hist.append(dict(kind="nop", wr=set(), rd=set(), srcc=set(), ab=set(), swr=set(),
                                  srd=set(), data=set(), passes=0, states=k))
            self.nops += k
            n -= k
        self.lines.append("    " + text)
        self.hist.append(cur)
        if len(self.hist) > 64:
            self.hist = self.hist[-40:]

    def nop(self, n):
        self.ins(f"s_nop {n - 1}", "nop", states=n)

    def salu(self, text, swr=(), srd=()):
        self.ins(text, "salu", swr=swr, srd=srd)

    @staticmethod
    def _regs(ops):
        v, s = set(), set()
        for o in ops:
            o = str(o).strip().lstrip("-")
            m = re.fullmatch(r"v(\d+)", o)
            if m:
                v.add(int(m.group(1)))
                continue
            m = re.fullmatch(r"v\[(\d+):(\d+)\]", o)
            if m:
                v |= set(range(int(m.group(1)), int(m.group(2)) + 1))
                continue
            m = re.fullmatch(r"s(\d+)", o)
            if m:
                s.add(o)
                continue
            if o == "vcc":
                s.add("vcc")
        return v, s

    def valu(self, op, dst, *srcs, trans=False, rmw=False):
        dv, ds_ = self._regs([dst])
        sv, ss = self._regs(srcs)
        if rmw:
            sv |= dv
        self.ins(f"{op} {dst}, " + ", ".join(str(s) for s in srcs), "trans" if trans else "valu",
                 wr=dv, rd=sv, swr=ds_, srd=ss)

    def permswap(self, op, a, b):
        self.ins(f"{op} v{a}, v{b}", "permlane", wr={a, b}, rd={a, b})

    def rfl(self, sdst, v):
        self.ins(f"v_readfirstlane_b32 {sdst}, v{v}", "rfl", rd={v}, swr={sdst})

    def mfma16(self, d, a, b, c=None):
        cs = "0" if c is None else vr(c, 4)
        srcc = set() if c is None else rng(c, 4)
        self.ins(f"v_mfma_f32_16x16x32_bf16 {vr(d, 4)}, {vr(a, 4)}, {vr(b, 4)}, {cs}", "mfma",
                 wr=rng(d, 4), rd=rng(a, 4) | rng(b, 4) | srcc, srcc=srcc, ab=rng(a, 4) | rng(b, 4), passes=4)

    def ds_read(self, op, dst, n, addr, off, tag):
        assert 0 <= off < 65536, off
        self.ins(f"{op} {vr(dst, n)}, v{addr} offset:{off}", "ds_read", wr=rng(dst, n), rd={addr})
        self.ldsq.append(tag)

    def lds_need(self, *tags):
        idx = -1
        for t in tags:
            for i, q in enumerate(self.ldsq):
                if q == t:
                    idx = max(idx, i)
        if idx < 0:
            return
        n = len(self.ldsq) - 1 - idx
        assert n <= 15
        self.ins(f"s_waitcnt lgkmcnt({n})", "wait")
        self.ldsq = self.ldsq[idx + 1:]

    def lds_drain(self):
        self.ins("s_waitcnt lgkmcnt(0)", "wait")
        self.ldsq = []

    def text(self):
        return "\n".join(self.lines) + "\n"
```

```python
import math
import struct
import sys

sys.path.insert(0, "gen")
from asmlib import Em, vr, rng

NAME = "standalone__gqa_softmax__near_ridge"
QH = 368 * 384
KH = 512 * 384
TILE = 12288
VBASE = 3 * TILE
QST = 6 * TILE
LDS_BYTES = QST + 8192
NSTEP = 16

def O(t, dt):
    return (t * 12 + dt) * 4

STASH = [(2, 4), (2, 5)]
QREG = {}
_r = 144
for _t in range(3):
    for _ds in range(6):
        if (_t, _ds) in STASH:
            continue
        QREG[(_t, _ds)] = _r
        _r += 4
assert _r == 208
SA = [208, 212, 216]
SB = [220, 224, 228]
BUF = [232, 236, 240]
M = [244, 245, 246]
L = [247, 248, 249]
AK, AV, VDMA, AQ, T0, T1 = 250, 251, 252, 253, 254, 255
ROT = BUF + SB

SQ, SK, SV, SO = 4, 8, 12, 16
S_W3072, S_C, S_J, S_GOFF, S_VDST, S_SLOT, S_NEXT, S_DELTA, S_T, S_R0 = 20, 21, 22, 23, 26, 27, 28, 29, 30, 31

C_SCALE = (192 ** -0.5) * math.log2(math.e)
C_BITS = struct.unpack("<I", struct.pack("<f", C_SCALE))[0]
THR_BITS = struct.unpack("<I", struct.pack("<f", 1024.0))[0]
MINIT_BITS = struct.unpack("<I", struct.pack("<f", -1.0e30))[0]


def srd(s):
    return f"s[{s}:{s + 3}]"


def dma(e, sr, soff, m0base, cb):
    e.salu(f"s_add_u32 m0, s{m0base}, {cb * 896}", swr={"m0"}, srd={f"s{m0base}"})
    e.ins(f"buffer_load_dwordx4 v{VDMA}, {srd(sr)}, s{soff} offen offset:{cb * 128} lds", "dma",
          rd={VDMA}, srd={f"s{soff}"})


def kread(e, buf, kt, ds):
    e.ds_read("ds_read_b128", buf, 4, AK, kt * 6144 + (ds >> 1) * 1024, f"K{kt}{ds}")


def qsread(e, buf, idx, tag):
    e.ds_read("ds_read_b128", buf, 4, AQ, idx * 1024, tag)


def vread(e, buf, n):
    cb = n % 3
    e.ds_read("ds_read_b64_tr_b16", buf, 2, AV, cb * 1024, f"V{n}")
    e.ds_read("ds_read_b64_tr_b16", buf + 2, 2, AV, cb * 1024 + 6144, f"V{n}")


def xor_ak(e):
    e.valu("v_xor_b32", f"v{AK}", 64, f"v{AK}")


def prefetch_items(e):
    return [
        lambda: kread(e, ROT[0], 0, 0),
        lambda: kread(e, ROT[1], 0, 2),
        lambda: kread(e, ROT[2], 0, 4),
        lambda: qsread(e, ROT[3], 0, "Qs4a"),
        lambda: (xor_ak(e), kread(e, ROT[4], 0, 1)),
        lambda: kread(e, ROT[5], 0, 3),
    ]


PREF_TAGS = ["K00", "K02", "K04", "Qs4a", "K01", "K03"]


def softmax_a_ops(e):
    ops = []
    for t in range(3):
        for r in range(4):
            ops.append(lambda t=t, r=r: e.valu("v_fma_f32", f"v{SA[t] + r}", f"v{SA[t] + r}", f"s{S_C}", f"-v{M[t]}"))
    for t in range(3):
        for r in range(4):
            ops.append(lambda t=t, r=r: e.valu("v_exp_f32", f"v{SA[t] + r}", f"v{SA[t] + r}", trans=True))
    for t in range(3):
        a = SA[t]
        tmp = (T0, T1, T0)[t]
        ops.append(lambda a=a, tmp=tmp: e.valu("v_add_f32", f"v{tmp}", f"v{a}", f"v{a + 1}"))
        ops.append(lambda a=a: e.valu("v_cvt_pk_bf16_f32", f"v{a}", f"v{a}", f"v{a + 1}"))
        ops.append(lambda a=a: e.valu("v_cvt_pk_bf16_f32", f"v{a + 1}", f"v{a + 2}", f"v{a + 3}"))
        ops.append(lambda a=a: e.valu("v_add_f32", f"v{a + 2}", f"v{a + 2}", f"v{a + 3}"))
        ops.append(lambda a=a, tmp=tmp: e.valu("v_add_f32", f"v{a + 2}", f"v{a + 2}", f"v{tmp}"))
    return ops


def softmax_b_ops(e):
    ops = []
    for t in range(3):
        for r in range(4):
            ops.append(lambda t=t, r=r: e.valu("v_fma_f32", f"v{SB[t] + r}", f"v{SB[t] + r}", f"s{S_C}", f"-v{M[t]}"))
    for t in range(3):
        for r in range(4):
            ops.append(lambda t=t, r=r: e.valu("v_exp_f32", f"v{SB[t] + r}", f"v{SB[t] + r}", trans=True))
    for t in range(3):
        a, b = SA[t], SB[t]
        ops.append(lambda b=b: e.valu("v_add_f32", f"v{T0}", f"v{b}", f"v{b + 1}"))
        ops.append(lambda b=b: e.valu("v_add_f32", f"v{T1}", f"v{b + 2}", f"v{b + 3}"))
        ops.append(lambda a=a: e.valu("v_add_f32", f"v{a + 2}", f"v{a + 2}", f"v{T0}"))
        ops.append(lambda a=a: e.valu("v_add_f32", f"v{a + 2}", f"v{a + 2}", f"v{T1}"))
    return ops


def qk(e, fast, extra=()):
    extra = list(extra)
    B0, B1, B2 = BUF
    first = {}

    def group(kt, ds, kbuf, qs=None, fill=None, nfill=0):
        S = SA if kt == 0 else SB
        tags = [f"K{kt}{ds}"] + ([qs[1]] if qs else [])
        e.lds_need(*tags)
        for t in range(3):
            q = QREG.get((t, ds))
            if q is None:
                q = qs[0]
            key = (kt, t)
            e.mfma16(S[t], kbuf, q, S[t] if key in first else None)
            first[key] = True
            if fill:
                for _ in range(nfill):
                    if fill:
                        fill.pop(0)()

    group(0, 0, ROT[0]); kread(e, B0, 0, 5)
    if extra: extra.pop(0)()
    group(0, 2, ROT[1]); qsread(e, B1, 1, "Qs5")
    if extra: extra.pop(0)()
    group(0, 4, ROT[2], qs=(ROT[3], "Qs4a")); kread(e, B2, 1, 5)
    if extra: extra.pop(0)()
    group(0, 1, ROT[4])
    group(0, 3, ROT[5])
    group(0, 5, B0, qs=(B1, "Qs5")); kread(e, B0, 1, 1)
    sm = softmax_a_ops(e) if fast else []
    group(1, 5, B2, qs=(B1, "Qs5")); kread(e, B2, 1, 3); xor_ak(e); kread(e, B1, 1, 0)
    group(1, 1, B0, fill=sm, nfill=2); kread(e, B0, 1, 2)
    group(1, 3, B2, fill=sm, nfill=3); kread(e, B2, 1, 4)
    group(1, 0, B1, fill=sm, nfill=3); qsread(e, B1, 0, "Qs4b")
    group(1, 2, B0, fill=sm, nfill=3)
    if fast: vread(e, B0, 0)
    group(1, 4, B2, qs=(B1, "Qs4b"), fill=sm, nfill=2)
    if fast:
        vread(e, B1, 1)
        vread(e, B2, 2)
    while sm:
        sm.pop(0)()
    assert not extra


def lane_reduce(e, x, y, op):
    e.valu("v_mov_b32", f"v{y}", f"v{x}")
    e.permswap("v_permlane32_swap_b32", x, y)
    e.valu(op, f"v{x}", f"v{x}", f"v{y}")
    e.valu("v_mov_b32", f"v{y}", f"v{x}")
    e.permswap("v_permlane16_swap_b32", x, y)
    e.valu(op, f"v{x}", f"v{x}", f"v{y}")


def gen():
    e = Em()
    hdr = open(f"cdna_kernels/{NAME}.s.ref").read().split("\n")
    head = [l for l in hdr if l.startswith(";") and "@launch" not in l]
    e.raw("\n".join(head))
    e.raw(f"; @launch grid=(1024,1,1) block=(256,1,1) lds={LDS_BYTES}")
    e.raw('.amdgcn_target "amdgcn-amd-amdhsa--gfx950"')
    e.raw(".text")
    e.raw(f".globl {NAME}_kernel")
    e.raw(".p2align 8")
    e.raw(f".type {NAME}_kernel,@function")
    e.label(f"{NAME}_kernel")

    e.salu("s_cmp_ge_u32 s2, 1024")
    e.salu("s_cbranch_scc1 L_end")
    e.salu("s_load_dwordx4 s[32:35], s[0:1], 0")
    e.salu("s_load_dwordx4 s[36:39], s[0:1], 16")
    e.salu("s_lshr_b32 s40, s2, 4")
    e.salu("s_lshl_b32 s40, s40, 3")
    e.salu("s_and_b32 s41, s2, 7")
    e.salu("s_or_b32 s40, s40, s41")
    e.salu("s_bfe_u32 s41, s2, 0x10003")
    e.salu(f"s_mul_i32 s42, s40, {QH}")
    e.salu(f"s_mul_i32 s43, s40, {KH}")
    TL, TI, TG, TA, TB, TC = 208, 209, 210, 211, 212, 213
    e.valu("v_lshrrev_b32", f"v{TA}", 6, "v0")
    e.valu("v_and_b32", f"v{TL}", 63, "v0")
    e.rfl("s44", TA)
    e.valu("v_and_b32", f"v{TI}", 15, f"v{TL}")
    e.valu("v_lshrrev_b32", f"v{TG}", 4, f"v{TL}")
    e.salu(f"s_mul_i32 s{S_W3072}, s44, 3072", srd={"s44"})
    e.salu(f"s_mul_i32 s{S_R0}, s41, 192")
    e.salu("s_mul_i32 s45, s44, 48")
    e.salu(f"s_add_u32 s{S_R0}, s{S_R0}, s45")
    e.salu(f"s_mov_b32 s{S_C}, 0x{C_BITS:08x}")
    e.valu("v_lshrrev_b32", f"v{TA}", 3, f"v{TL}")
    e.valu("v_and_b32", f"v{TB}", 6, f"v{TA}")
    e.valu("v_and_b32", f"v{TC}", 7, f"v{TL}")
    e.valu("v_xor_b32", f"v{TB}", f"v{TB}", f"v{TC}")
    e.valu("v_lshlrev_b32", f"v{TB}", 4, f"v{TB}")
    e.valu("v_mul_u32_u24", f"v{TA}", 384, f"v{TA}")
    e.valu("v_add_u32", f"v{VDMA}", f"v{TA}", f"v{TB}")
    e.valu("v_lshrrev_b32", f"v{TA}", 3, f"v{TI}")
    e.valu("v_mul_u32_u24", f"v{TA}", 3072, f"v{TA}")
    e.valu("v_and_b32", f"v{TB}", 7, f"v{TI}")
    e.valu("v_lshlrev_b32", f"v{TB}", 7, f"v{TB}")
    e.valu("v_add_u32", f"v{TA}", f"v{TA}", f"v{TB}")
    e.valu("v_and_b32", f"v{TB}", 6, f"v{TI}")
    e.valu("v_xor_b32", f"v{TB}", f"v{TB}", f"v{TG}")
    e.valu("v_lshlrev_b32", f"v{TB}", 4, f"v{TB}")
    e.valu("v_add_u32", f"v{AK}", f"v{TA}", f"v{TB}")
    e.valu("v_and_b32", f"v{TA}", 1, f"v{TG}")
    e.valu("v_lshlrev_b32", f"v{TA}", 2, f"v{TA}")
    e.valu("v_lshrrev_b32", f"v{TB}", 2, f"v{TI}")
    e.valu("v_add_u32", f"v{TA}", f"v{TA}", f"v{TB}")
    e.valu("v_and_b32", f"v{TB}", 6, f"v{TA}")
    e.valu("v_bfe_u32", f"v{TC}", f"v{TI}", 1, 1)
    e.valu("v_or_b32", f"v{TB}", f"v{TB}", f"v{TC}")
    e.valu("v_lshlrev_b32", f"v{TB}", 4, f"v{TB}")
    e.valu("v_lshlrev_b32", f"v{TA}", 7, f"v{TA}")
    e.valu("v_add_u32", f"v{TA}", f"v{TA}", f"v{TB}")
    e.valu("v_and_b32", f"v{TB}", 1, f"v{TI}")
    e.valu("v_lshlrev_b32", f"v{TB}", 3, f"v{TB}")
    e.valu("v_add_u32", f"v{TA}", f"v{TA}", f"v{TB}")
    e.valu("v_lshrrev_b32", f"v{TB}", 1, f"v{TG}")
    e.valu("v_mul_u32_u24", f"v{TB}", 3072, f"v{TB}")
    e.valu("v_add_u32", f"v{TA}", f"v{TA}", f"v{TB}")
    e.valu("v_add_u32", f"v{AV}", VBASE, f"v{TA}")
    e.salu("s_lshl_b32 s45, s44, 11")
    e.salu(f"s_add_u32 s45, s45, {QST}")
    e.valu("v_lshlrev_b32", f"v{TA}", 4, f"v{TL}")
    e.valu("v_add_u32", f"v{AQ}", "s45", f"v{TA}")
    e.valu("v_add_u32", f"v{TA}", f"s{S_R0}", f"v{TI}")
    e.valu("v_mul_u32_u24", f"v{TA}", 384, f"v{TA}")
    e.valu("v_lshlrev_b32", f"v{TB}", 4, f"v{TG}")
    e.valu("v_add_u32", f"v{T0}", f"v{TA}", f"v{TB}")
    e.ins("s_waitcnt lgkmcnt(0)", "wait")
    for (s, p, off, n) in ((SQ, 32, 42, QH), (SK, 34, 43, KH), (SV, 36, 43, KH), (SO, 38, 42, QH)):
        e.salu(f"s_add_u32 s{s}, s{p}, s{off}")
        e.salu(f"s_addc_u32 s{s + 1}, s{p + 1}, 0")
        e.salu(f"s_and_b32 s{s + 1}, s{s + 1}, 0xffff")
        e.salu(f"s_mov_b32 s{s + 2}, {n}")
        e.salu(f"s_mov_b32 s{s + 3}, 0x20000")

    def pro_tile(sr, tile, ldsbase):
        e.salu(f"s_add_u32 s46, s{S_W3072}, {tile * TILE}")
        e.salu(f"s_add_u32 s47, s{S_W3072}, {ldsbase}")
        for cb in range(3):
            dma(e, sr, 46, 47, cb)

    pro_tile(SK, 0, 0)
    for t in range(3):
        e.salu(f"s_mov_b32 s46, {t * 6144}")
        for ds in range(6):
            if (t, ds) in STASH:
                idx = STASH.index((t, ds))
                e.salu(f"s_add_u32 m0, s45, {idx * 1024 - ds * 64}", swr={"m0"})
                e.ins(f"buffer_load_dwordx4 v{T0}, {srd(SQ)}, s46 offen offset:{ds * 64} lds", "dma", rd={T0})
            else:
                q = QREG[(t, ds)]
                e.ins(f"buffer_load_dwordx4 {vr(q, 4)}, v{T0}, {srd(SQ)}, s46 offen offset:{ds * 64}", "vload",
                      wr=rng(q, 4), rd={T0})
    pro_tile(SV, 0, VBASE)
    pro_tile(SK, 1, TILE)
    pro_tile(SV, 1, VBASE + TILE)
    pro_tile(SK, 2, 2 * TILE)
    pro_tile(SV, 2, VBASE + 2 * TILE)
    e.salu(f"s_mov_b32 s{S_J}, 0")
    e.salu(f"s_mov_b32 s{S_SLOT}, 0")
    e.salu(f"s_add_u32 s{S_GOFF}, s{S_W3072}, {3 * TILE}")
    for r in range(144):
        e.valu("v_mov_b32", f"v{r}", 0)
    for t in range(3):
        e.valu("v_mov_b32", f"v{M[t]}", f"0x{MINIT_BITS:08x}")
        e.valu("v_mov_b32", f"v{L[t]}", 0)
    e.ins("s_waitcnt vmcnt(12)", "wait")
    e.ins("s_barrier", "wait")
    e.salu("s_branch L_slow")

    e.raw(".p2align 6")
    e.label("L_top")
    e.ldsq = list(PREF_TAGS)
    e.ins("s_waitcnt vmcnt(9)", "wait")
    e.ins("s_barrier", "wait")
    xd = [lambda cb=cb: dma(e, SV, S_GOFF, S_VDST, cb) for cb in range(3)]
    xd[2] = lambda: (dma(e, SV, S_GOFF, S_VDST, 2), e.salu(f"s_add_u32 s{S_GOFF}, s{S_GOFF}, {TILE}"))
    qk(e, True, xd)
    for op in softmax_b_ops(e):
        op()
    e.valu("v_max3_f32", f"v{T0}", f"v{SA[0] + 2}", f"v{SA[1] + 2}", f"v{SA[2] + 2}")
    e.valu("v_cmp_lt_f32", "vcc", f"0x{THR_BITS:08x}", f"v{T0}")
    e.salu("s_cbranch_vccnz L_rare", srd={"vcc"})
    e.label("L_after", keep_hist=True)
    q_after = list(e.ldsq)
    for t in range(3):
        e.valu("v_add_f32", f"v{L[t]}", f"v{L[t]}", f"v{SA[t] + 2}")
    for t in range(3):
        a, b = SA[t], SB[t]
        e.valu("v_cvt_pk_bf16_f32", f"v{a + 2}", f"v{b}", f"v{b + 1}")
        e.valu("v_cvt_pk_bf16_f32", f"v{a + 3}", f"v{b + 2}", f"v{b + 3}")
    e.valu("v_xor_b32", f"v{AV}", 32, f"v{AV}")
    for n in (3, 4, 5):
        vread(e, ROT[n], n)
    e.ins("s_waitcnt vmcnt(9)", "wait")
    e.ins("s_barrier", "wait")
    e.salu(f"s_add_u32 s{S_T}, s{S_SLOT}, s{S_W3072}")
    e.salu(f"s_add_u32 s{S_VDST}, s{S_T}, {VBASE}")
    e.salu(f"s_add_u32 s{S_NEXT}, s{S_SLOT}, {TILE}")
    e.salu(f"s_cmp_eq_u32 s{S_NEXT}, {3 * TILE}")
    e.salu(f"s_cselect_b32 s{S_NEXT}, 0, s{S_NEXT}")
    e.salu(f"s_sub_u32 s{S_DELTA}, s{S_NEXT}, s{S_SLOT}")
    e.salu(f"s_mov_b32 s{S_SLOT}, s{S_NEXT}")
    e.valu("v_add_u32", f"v{AK}", f"s{S_DELTA}", f"v{AK}")
    yd = [lambda cb=cb: dma(e, SK, S_GOFF, S_T, cb) for cb in range(3)]
    pf = prefetch_items(e)
    for n in range(12):
        dt = 4 * (n % 3) + n // 3
        e.lds_need(f"V{n}")
        for t in range(3):
            e.mfma16(O(t, dt), ROT[n % 6], SA[t], O(t, dt))
        if n + 6 < 12:
            if n + 6 == 6:
                e.valu("v_xor_b32", f"v{AV}", 96, f"v{AV}")
            if n + 6 == 9:
                e.valu("v_xor_b32", f"v{AV}", 32, f"v{AV}")
            vread(e, ROT[n % 6], n + 6)
            if n + 6 == 11:
                e.valu("v_xor_b32", f"v{AV}", 96, f"v{AV}")
                e.valu("v_add_u32", f"v{AV}", f"s{S_DELTA}", f"v{AV}")
        else:
            pf.pop(0)()
        if yd:
            yd.pop(0)()
    assert e.ldsq == PREF_TAGS, e.ldsq
    e.salu(f"s_add_u32 s{S_J}, s{S_J}, 1")
    e.salu(f"s_cmp_lt_u32 s{S_J}, {NSTEP}")
    e.salu("s_cbranch_scc1 L_top")

    e.lds_drain()
    e.nop(8)
    TA, TB, TC, TI, TG = 232, 233, 234, 235, 236
    e.valu("v_mbcnt_lo_u32_b32", f"v{TA}", -1, 0)
    e.valu("v_mbcnt_hi_u32_b32", f"v{TA}", -1, f"v{TA}")
    e.valu("v_and_b32", f"v{TI}", 15, f"v{TA}")
    e.valu("v_lshrrev_b32", f"v{TG}", 4, f"v{TA}")
    e.valu("v_add_u32", f"v{TA}", f"s{S_R0}", f"v{TI}")
    e.valu("v_mul_u32_u24", f"v{TA}", 384, f"v{TA}")
    e.valu("v_and_b32", f"v{TB}", 1, f"v{TG}")
    e.valu("v_lshlrev_b32", f"v{TB}", 5, f"v{TB}")
    e.valu("v_add_u32", f"v{TA}", f"v{TA}", f"v{TB}")
    e.valu("v_lshrrev_b32", f"v{TB}", 1, f"v{TG}")
    e.valu("v_lshlrev_b32", f"v{TB}", 4, f"v{TB}")
    e.valu("v_add_u32", f"v{AK}", f"v{TA}", f"v{TB}")
    for t in range(3):
        lane_reduce(e, L[t], T0, "v_add_f32")
    for t in range(3):
        e.valu("v_rcp_f32", f"v{L[t]}", f"v{L[t]}", trans=True)
    k = 0
    for t in range(3):
        e.salu(f"s_mov_b32 s46, {t * 6144}")
        for dp in range(6):
            x, y = O(t, 2 * dp), O(t, 2 * dp + 1)
            for r in range(4):
                e.valu("v_mul_f32", f"v{x + r}", f"v{x + r}", f"v{L[t]}")
            for r in range(4):
                e.valu("v_mul_f32", f"v{y + r}", f"v{y + r}", f"v{L[t]}")
            d = 208 + 4 * (k % 6)
            k += 1
            e.valu("v_cvt_pk_bf16_f32", f"v{d}", f"v{x}", f"v{x + 1}")
            e.valu("v_cvt_pk_bf16_f32", f"v{d + 1}", f"v{x + 2}", f"v{x + 3}")
            e.valu("v_cvt_pk_bf16_f32", f"v{d + 2}", f"v{y}", f"v{y + 1}")
            e.valu("v_cvt_pk_bf16_f32", f"v{d + 3}", f"v{y + 2}", f"v{y + 3}")
            e.permswap("v_permlane16_swap_b32", d, d + 2)
            e.permswap("v_permlane16_swap_b32", d + 1, d + 3)
            e.ins(f"buffer_store_dwordx4 {vr(d, 4)}, v{AK}, {srd(SO)}, s46 offen offset:{dp * 64}", "vstore",
                  rd=rng(d, 4) | {AK}, data=rng(d, 4))
    e.label("L_end")
    e.raw("    s_endpgm")

    e.label("L_rare")
    e.ldsq = []
    e.ins("s_waitcnt lgkmcnt(0)", "wait")
    e.nop(4)
    e.label("L_slow", keep_hist=True)
    for it in prefetch_items(e):
        it()
    qk(e, False)
    MX = [232, 233, 234]
    Y = [236, 237, 238]
    for t in range(3):
        a, b = SA[t], SB[t]
        e.valu("v_max3_f32", f"v{MX[t]}", f"v{a}", f"v{a + 1}", f"v{a + 2}")
        e.valu("v_max3_f32", f"v{MX[t]}", f"v{MX[t]}", f"v{a + 3}", f"v{b}")
        e.valu("v_max3_f32", f"v{MX[t]}", f"v{MX[t]}", f"v{b + 1}", f"v{b + 2}")
        e.valu("v_max_f32", f"v{MX[t]}", f"v{MX[t]}", f"v{b + 3}")
    for t in range(3):
        lane_reduce(e, MX[t], Y[t], "v_max_f32")
    for t in range(3):
        e.valu("v_mul_f32", f"v{MX[t]}", f"s{S_C}", f"v{MX[t]}")
        e.valu("v_ceil_f32", f"v{MX[t]}", f"v{MX[t]}")
        e.valu("v_max_f32", f"v{MX[t]}", f"v{MX[t]}", f"v{M[t]}")
        e.valu("v_sub_f32", f"v{Y[t]}", f"v{M[t]}", f"v{MX[t]}")
        e.valu("v_exp_f32", f"v{Y[t]}", f"v{Y[t]}", trans=True)
        e.valu("v_mov_b32", f"v{M[t]}", f"v{MX[t]}")
        e.valu("v_mul_f32", f"v{L[t]}", f"v{L[t]}", f"v{Y[t]}")
    e.salu(f"s_cmp_eq_u32 s{S_J}, 0")
    e.salu("s_cbranch_scc1 L_norescale")
    for t in range(3):
        for r in range(48):
            e.valu("v_mul_f32", f"v{t * 48 + r}", f"v{t * 48 + r}", f"v{Y[t]}")
    e.label("L_norescale", keep_hist=True)
    for op in softmax_a_ops(e):
        op()
    for op in softmax_b_ops(e):
        op()
    for n in range(3):
        vread(e, BUF[n], n)
    assert e.ldsq == q_after, (e.ldsq, q_after)
    e.nop(4)
    e.salu("s_branch L_after")

    e.raw('.section .rodata,"a"')
    e.raw(".p2align 6")
    e.raw(f".amdhsa_kernel {NAME}_kernel")
    e.raw("  .amdhsa_next_free_vgpr 256")
    e.raw("  .amdhsa_next_free_sgpr 64")
    e.raw("  .amdhsa_accum_offset 256")
    e.raw("  .amdhsa_group_segment_fixed_size 0")
    e.raw("  .amdhsa_kernarg_size 48")
    e.raw("  .amdhsa_user_sgpr_count 2")
    e.raw("  .amdhsa_user_sgpr_kernarg_segment_ptr 1")
    e.raw("  .amdhsa_system_sgpr_workgroup_id_x 1")
    e.raw(".end_amdhsa_kernel")
    return e.text()


if __name__ == "__main__":
    out = sys.argv[1] if len(sys.argv) > 1 else f"cdna_kernels/{NAME}.s"
    open(out, "w").write(gen())
    print("wrote", out)
```

```python
import math
import struct
import sys

sys.path.insert(0, "gen")
from asmlib import Em, vr, rng

NAME = "standalone__gqa_softmax__near_ridge"
QH = 368 * 384
KH = 512 * 384
TILE = 12288
VBASE = 3 * TILE
QST = 6 * TILE
LDS_BYTES = QST + 8192
NSTEP = 16

def O(t, dt):
    return (t * 12 + dt) * 4

STASH = [(2, 4), (2, 5)]
QREG = {}
_r = 144
for _t in range(3):
    for _ds in range(6):
        if (_t, _ds) in STASH:
            continue
        QREG[(_t, _ds)] = _r
        _r += 4
assert _r == 208
SA = [208, 212, 216]
SB = [220, 224, 228]
BUF = [232, 236, 240]
M = [244, 245, 246]
L = [247, 248, 249]
AK, AV, VDMA, AQ, T0, T1 = 250, 251, 252, 253, 254, 255
ROT = BUF + SB

SQ, SK, SV, SO = 4, 8, 12, 16
S_W3072, S_C, S_J, S_GOFF, S_VDST, S_SLOT, S_NEXT, S_DELTA, S_T, S_R0 = 20, 21, 22, 23, 26, 27, 28, 29, 30, 31

C_SCALE = (192 ** -0.5) * math.log2(math.e)
C_BITS = struct.unpack("<I", struct.pack("<f", C_SCALE))[0]
THR_BITS = struct.unpack("<I", struct.pack("<f", 1024.0))[0]
MINIT_BITS = struct.unpack("<I", struct.pack("<f", -1.0e30))[0]


def srd(s):
    return f"s[{s}:{s + 3}]"


def dma(e, sr, soff, m0base, cb):
    e.salu(f"s_add_u32 m0, s{m0base}, {cb * 896}", swr={"m0"}, srd={f"s{m0base}"})
    e.ins(f"buffer_load_dwordx4 v{VDMA}, {srd(sr)}, s{soff} offen offset:{cb * 128} lds", "dma",
          rd={VDMA}, srd={f"s{soff}"})


def kread(e, buf, kt, ds):
    e.ds_read("ds_read_b128", buf, 4, AK, kt * 6144 + (ds >> 1) * 1024, f"K{kt}{ds}")


def qsread(e, buf, idx, tag):
    e.ds_read("ds_read_b128", buf, 4, AQ, idx * 1024, tag)


def vread(e, buf, n):
    cb = n % 3
    e.ds_read("ds_read_b64_tr_b16", buf, 2, AV, cb * 1024, f"V{n}")
    e.ds_read("ds_read_b64_tr_b16", buf + 2, 2, AV, cb * 1024 + 6144, f"V{n}")


def xor_ak(e):
    e.valu("v_xor_b32", f"v{AK}", 64, f"v{AK}")


def prefetch_items(e):
    return [
        lambda: kread(e, ROT[0], 0, 0),
        lambda: kread(e, ROT[1], 0, 2),
        lambda: kread(e, ROT[2], 0, 4),
        lambda: qsread(e, ROT[3], 0, "Qs4a"),
        lambda: (xor_ak(e), kread(e, ROT[4], 0, 1)),
        lambda: kread(e, ROT[5], 0, 3),
    ]


PREF_TAGS = ["K00", "K02", "K04", "Qs4a", "K01", "K03"]


def softmax_a_ops(e):
    ops = []
    for t in range(3):
        for r in range(4):
            ops.append(lambda t=t, r=r: e.valu("v_fma_f32", f"v{SA[t] + r}", f"v{SA[t] + r}", f"s{S_C}", f"-v{M[t]}"))
    for t in range(3):
        for r in range(4):
            ops.append(lambda t=t, r=r: e.valu("v_exp_f32", f"v{SA[t] + r}", f"v{SA[t] + r}", trans=True))
    for t in range(3):
        a = SA[t]
        tmp = (T0, T1, T0)[t]
        ops.append(lambda a=a, tmp=tmp: e.valu("v_add_f32", f"v{tmp}", f"v{a}", f"v{a + 1}"))
        ops.append(lambda a=a: e.valu("v_cvt_pk_bf16_f32", f"v{a}", f"v{a}", f"v{a + 1}"))
        ops.append(lambda a=a: e.valu("v_cvt_pk_bf16_f32", f"v{a + 1}", f"v{a + 2}", f"v{a + 3}"))
        ops.append(lambda a=a: e.valu("v_add_f32", f"v{a + 2}", f"v{a + 2}", f"v{a + 3}"))
        ops.append(lambda a=a, tmp=tmp: e.valu("v_add_f32", f"v{a + 2}", f"v{a + 2}", f"v{tmp}"))
    return ops


def softmax_b_ops(e):
    ops = []
    for t in range(3):
        for r in range(4):
            ops.append(lambda t=t, r=r: e.valu("v_fma_f32", f"v{SB[t] + r}", f"v{SB[t] + r}", f"s{S_C}", f"-v{M[t]}"))
    for t in range(3):
        for r in range(4):
            ops.append(lambda t=t, r=r: e.valu("v_exp_f32", f"v{SB[t] + r}", f"v{SB[t] + r}", trans=True))
    for t in range(3):
        a, b = SA[t], SB[t]
        ops.append(lambda b=b: e.valu("v_add_f32", f"v{T0}", f"v{b}", f"v{b + 1}"))
        ops.append(lambda b=b: e.valu("v_add_f32", f"v{T1}", f"v{b + 2}", f"v{b + 3}"))
        ops.append(lambda a=a: e.valu("v_add_f32", f"v{a + 2}", f"v{a + 2}", f"v{T0}"))
        ops.append(lambda a=a: e.valu("v_add_f32", f"v{a + 2}", f"v{a + 2}", f"v{T1}"))
    return ops


def qk(e, fast, extra=()):
    extra = list(extra)
    B0, B1, B2 = BUF
    first = {}

    def group(kt, ds, kbuf, qs=None, fill=None, nfill=0):
        S = SA if kt == 0 else SB
        tags = [f"K{kt}{ds}"] + ([qs[1]] if qs else [])
        e.lds_need(*tags)
        for t in range(3):
            q = QREG.get((t, ds))
            if q is None:
                q = qs[0]
            key = (kt, t)
            e.mfma16(S[t], kbuf, q, S[t] if key in first else None)
            first[key] = True
            if fill:
                for _ in range(nfill):
                    if fill:
                        fill.pop(0)()

    group(0, 0, ROT[0]); kread(e, B0, 0, 5)
    if extra: extra.pop(0)()
    group(0, 2, ROT[1]); qsread(e, B1, 1, "Qs5")
    if extra: extra.pop(0)()
    group(0, 4, ROT[2], qs=(ROT[3], "Qs4a")); kread(e, B2, 1, 5)
    if extra: extra.pop(0)()
    group(0, 1, ROT[4])
    group(0, 3, ROT[5])
    group(0, 5, B0, qs=(B1, "Qs5")); kread(e, B0, 1, 1)
    sm = softmax_a_ops(e) if fast else []
    group(1, 5, B2, qs=(B1, "Qs5")); kread(e, B2, 1, 3); xor_ak(e); kread(e, B1, 1, 0)
    group(1, 1, B0, fill=sm, nfill=2); kread(e, B0, 1, 2)
    group(1, 3, B2, fill=sm, nfill=3); kread(e, B2, 1, 4)
    group(1, 0, B1, fill=sm, nfill=3); qsread(e, B1, 0, "Qs4b")
    group(1, 2, B0, fill=sm, nfill=3)
    if fast: vread(e, B0, 0)
    group(1, 4, B2, qs=(B1, "Qs4b"), fill=sm, nfill=2)
    if fast:
        vread(e, B1, 1)
        vread(e, B2, 2)
    while sm:
        sm.pop(0)()
    assert not extra


def lane_reduce(e, x, y, op):
    e.valu("v_mov_b32", f"v{y}", f"v{x}")
    e.permswap("v_permlane32_swap_b32", x, y)
    e.valu(op, f"v{x}", f"v{x}", f"v{y}")
    e.valu("v_mov_b32", f"v{y}", f"v{x}")
    e.permswap("v_permlane16_swap_b32", x, y)
    e.valu(op, f"v{x}", f"v{x}", f"v{y}")


DIAG = "--diag" in sys.argv


def stamp(e, k):
    if DIAG:
        e.salu(f"s_memrealtime s[{48 + 2 * k}:{49 + 2 * k}]")
        e.ins("s_waitcnt lgkmcnt(0)", "wait")


def gen():
    e = Em()
    hdr = open(f"cdna_kernels/{NAME}.s.ref").read().split("\n")
    head = [l for l in hdr if l.startswith(";") and "@launch" not in l]
    e.raw("\n".join(head))
    e.raw(f"; @launch grid=(1024,1,1) block=(256,1,1) lds={LDS_BYTES}")
    e.raw('.amdgcn_target "amdgcn-amd-amdhsa--gfx950"')
    e.raw(".text")
    e.raw(f".globl {NAME}_kernel")
    e.raw(".p2align 8")
    e.raw(f".type {NAME}_kernel,@function")
    e.label(f"{NAME}_kernel")

    e.salu("s_cmp_ge_u32 s2, 1024")
    e.salu("s_cbranch_scc1 L_end")
    if DIAG:
        e.salu("s_memrealtime s[48:49]")
        e.salu("s_memtime s[56:57]")
        e.salu("s_load_dwordx2 s[60:61], s[0:1], 40")
    e.salu("s_load_dwordx4 s[32:35], s[0:1], 0")
    e.salu("s_load_dwordx4 s[36:39], s[0:1], 16")
    e.salu("s_lshr_b32 s40, s2, 4")
    e.salu("s_lshl_b32 s40, s40, 3")
    e.salu("s_and_b32 s41, s2, 7")
    e.salu("s_or_b32 s40, s40, s41")
    e.salu("s_bfe_u32 s41, s2, 0x10003")
    e.salu(f"s_mul_i32 s42, s40, {QH}")
    e.salu(f"s_mul_i32 s43, s40, {KH}")
    TL, TI, TG, TA, TB, TC = 208, 209, 210, 211, 212, 213
    e.valu("v_lshrrev_b32", f"v{TA}", 6, "v0")
    e.valu("v_and_b32", f"v{TL}", 63, "v0")
    e.rfl("s44", TA)
    e.valu("v_and_b32", f"v{TI}", 15, f"v{TL}")
    e.valu("v_lshrrev_b32", f"v{TG}", 4, f"v{TL}")
    e.salu(f"s_mul_i32 s{S_W3072}, s44, 3072", srd={"s44"})
    e.salu(f"s_mul_i32 s{S_R0}, s41, 192")
    e.salu("s_mul_i32 s45, s44, 48")
    e.salu(f"s_add_u32 s{S_R0}, s{S_R0}, s45")
    e.salu(f"s_mov_b32 s{S_C}, 0x{C_BITS:08x}")
    e.valu("v_lshrrev_b32", f"v{TA}", 3, f"v{TL}")
    e.valu("v_and_b32", f"v{TB}", 6, f"v{TA}")
    e.valu("v_and_b32", f"v{TC}", 7, f"v{TL}")
    e.valu("v_xor_b32", f"v{TB}", f"v{TB}", f"v{TC}")
    e.valu("v_lshlrev_b32", f"v{TB}", 4, f"v{TB}")
    e.valu("v_mul_u32_u24", f"v{TA}", 384, f"v{TA}")
    e.valu("v_add_u32", f"v{VDMA}", f"v{TA}", f"v{TB}")
    e.valu("v_lshrrev_b32", f"v{TA}", 3, f"v{TI}")
    e.valu("v_mul_u32_u24", f"v{TA}", 3072, f"v{TA}")
    e.valu("v_and_b32", f"v{TB}", 7, f"v{TI}")
    e.valu("v_lshlrev_b32", f"v{TB}", 7, f"v{TB}")
    e.valu("v_add_u32", f"v{TA}", f"v{TA}", f"v{TB}")
    e.valu("v_and_b32", f"v{TB}", 6, f"v{TI}")
    e.valu("v_xor_b32", f"v{TB}", f"v{TB}", f"v{TG}")
    e.valu("v_lshlrev_b32", f"v{TB}", 4, f"v{TB}")
    e.valu("v_add_u32", f"v{AK}", f"v{TA}", f"v{TB}")
    e.valu("v_and_b32", f"v{TA}", 1, f"v{TG}")
    e.valu("v_lshlrev_b32", f"v{TA}", 2, f"v{TA}")
    e.valu("v_lshrrev_b32", f"v{TB}", 2, f"v{TI}")
    e.valu("v_add_u32", f"v{TA}", f"v{TA}", f"v{TB}")
    e.valu("v_and_b32", f"v{TB}", 6, f"v{TA}")
    e.valu("v_bfe_u32", f"v{TC}", f"v{TI}", 1, 1)
    e.valu("v_or_b32", f"v{TB}", f"v{TB}", f"v{TC}")
    e.valu("v_lshlrev_b32", f"v{TB}", 4, f"v{TB}")
    e.valu("v_lshlrev_b32", f"v{TA}", 7, f"v{TA}")
    e.valu("v_add_u32", f"v{TA}", f"v{TA}", f"v{TB}")
    e.valu("v_and_b32", f"v{TB}", 1, f"v{TI}")
    e.valu("v_lshlrev_b32", f"v{TB}", 3, f"v{TB}")
    e.valu("v_add_u32", f"v{TA}", f"v{TA}", f"v{TB}")
    e.valu("v_lshrrev_b32", f"v{TB}", 1, f"v{TG}")
    e.valu("v_mul_u32_u24", f"v{TB}", 3072, f"v{TB}")
    e.valu("v_add_u32", f"v{TA}", f"v{TA}", f"v{TB}")
    e.valu("v_add_u32", f"v{AV}", VBASE, f"v{TA}")
    e.salu("s_lshl_b32 s45, s44, 11")
    e.salu(f"s_add_u32 s45, s45, {QST}")
    e.valu("v_lshlrev_b32", f"v{TA}", 4, f"v{TL}")
    e.valu("v_add_u32", f"v{AQ}", "s45", f"v{TA}")
    e.valu("v_add_u32", f"v{TA}", f"s{S_R0}", f"v{TI}")
    e.valu("v_mul_u32_u24", f"v{TA}", 384, f"v{TA}")
    e.valu("v_lshlrev_b32", f"v{TB}", 4, f"v{TG}")
    e.valu("v_add_u32", f"v{T0}", f"v{TA}", f"v{TB}")
    e.ins("s_waitcnt lgkmcnt(0)", "wait")
    for (s, p, off, n) in ((SQ, 32, 42, QH), (SK, 34, 43, KH), (SV, 36, 43, KH), (SO, 38, 42, QH)):
        e.salu(f"s_add_u32 s{s}, s{p}, s{off}")
        e.salu(f"s_addc_u32 s{s + 1}, s{p + 1}, 0")
        e.salu(f"s_and_b32 s{s + 1}, s{s + 1}, 0xffff")
        e.salu(f"s_mov_b32 s{s + 2}, {n}")
        e.salu(f"s_mov_b32 s{s + 3}, 0x20000")

    def pro_tile(sr, tile, ldsbase):
        e.salu(f"s_add_u32 s46, s{S_W3072}, {tile * TILE}")
        e.salu(f"s_add_u32 s47, s{S_W3072}, {ldsbase}")
        for cb in range(3):
            dma(e, sr, 46, 47, cb)

    pro_tile(SK, 0, 0)
    for t in range(3):
        e.salu(f"s_mov_b32 s46, {t * 6144}")
        for ds in range(6):
            if (t, ds) in STASH:
                idx = STASH.index((t, ds))
                e.salu(f"s_add_u32 m0, s45, {idx * 1024 - ds * 64}", swr={"m0"})
                e.ins(f"buffer_load_dwordx4 v{T0}, {srd(SQ)}, s46 offen offset:{ds * 64} lds", "dma", rd={T0})
            else:
                q = QREG[(t, ds)]
                e.ins(f"buffer_load_dwordx4 {vr(q, 4)}, v{T0}, {srd(SQ)}, s46 offen offset:{ds * 64}", "vload",
                      wr=rng(q, 4), rd={T0})
    pro_tile(SV, 0, VBASE)
    pro_tile(SK, 1, TILE)
    pro_tile(SV, 1, VBASE + TILE)
    pro_tile(SK, 2, 2 * TILE)
    pro_tile(SV, 2, VBASE + 2 * TILE)
    e.salu(f"s_mov_b32 s{S_J}, 0")
    e.salu(f"s_mov_b32 s{S_SLOT}, 0")
    e.salu(f"s_add_u32 s{S_GOFF}, s{S_W3072}, {3 * TILE}")
    for r in range(144):
        e.valu("v_mov_b32", f"v{r}", 0)
    for t in range(3):
        e.valu("v_mov_b32", f"v{M[t]}", f"0x{MINIT_BITS:08x}")
        e.valu("v_mov_b32", f"v{L[t]}", 0)
    e.ins("s_waitcnt vmcnt(12)", "wait")
    e.ins("s_barrier", "wait")
    stamp(e, 1)
    e.salu("s_branch L_slow")

    e.raw(".p2align 6")
    e.label("L_top")
    e.ldsq = list(PREF_TAGS)
    e.ins("s_waitcnt vmcnt(9)", "wait")
    e.ins("s_barrier", "wait")
    xd = [lambda cb=cb: dma(e, SV, S_GOFF, S_VDST, cb) for cb in range(3)]
    xd[2] = lambda: (dma(e, SV, S_GOFF, S_VDST, 2), e.salu(f"s_add_u32 s{S_GOFF}, s{S_GOFF}, {TILE}"))
    qk(e, True, xd)
    for op in softmax_b_ops(e):
        op()
    e.valu("v_max3_f32", f"v{T0}", f"v{SA[0] + 2}", f"v{SA[1] + 2}", f"v{SA[2] + 2}")
    e.valu("v_cmp_lt_f32", "vcc", f"0x{THR_BITS:08x}", f"v{T0}")
    e.salu("s_cbranch_vccnz L_rare", srd={"vcc"})
    e.label("L_after", keep_hist=True)
    q_after = list(e.ldsq)
    for t in range(3):
        e.valu("v_add_f32", f"v{L[t]}", f"v{L[t]}", f"v{SA[t] + 2}")
    for t in range(3):
        a, b = SA[t], SB[t]
        e.valu("v_cvt_pk_bf16_f32", f"v{a + 2}", f"v{b}", f"v{b + 1}")
        e.valu("v_cvt_pk_bf16_f32", f"v{a + 3}", f"v{b + 2}", f"v{b + 3}")
    e.valu("v_xor_b32", f"v{AV}", 32, f"v{AV}")
    for n in (3, 4, 5):
        vread(e, ROT[n], n)
    e.ins("s_waitcnt vmcnt(9)", "wait")
    e.ins("s_barrier", "wait")
    e.salu(f"s_add_u32 s{S_T}, s{S_SLOT}, s{S_W3072}")
    e.salu(f"s_add_u32 s{S_VDST}, s{S_T}, {VBASE}")
    e.salu(f"s_add_u32 s{S_NEXT}, s{S_SLOT}, {TILE}")
    e.salu(f"s_cmp_eq_u32 s{S_NEXT}, {3 * TILE}")
    e.salu(f"s_cselect_b32 s{S_NEXT}, 0, s{S_NEXT}")
    e.salu(f"s_sub_u32 s{S_DELTA}, s{S_NEXT}, s{S_SLOT}")
    e.salu(f"s_mov_b32 s{S_SLOT}, s{S_NEXT}")
    e.valu("v_add_u32", f"v{AK}", f"s{S_DELTA}", f"v{AK}")
    yd = [lambda cb=cb: dma(e, SK, S_GOFF, S_T, cb) for cb in range(3)]
    pf = prefetch_items(e)
    for n in range(12):
        dt = 4 * (n % 3) + n // 3
        e.lds_need(f"V{n}")
        for t in range(3):
            e.mfma16(O(t, dt), ROT[n % 6], SA[t], O(t, dt))
        if n + 6 < 12:
            if n + 6 == 6:
                e.valu("v_xor_b32", f"v{AV}", 96, f"v{AV}")
            if n + 6 == 9:
                e.valu("v_xor_b32", f"v{AV}", 32, f"v{AV}")
            vread(e, ROT[n % 6], n + 6)
            if n + 6 == 11:
                e.valu("v_xor_b32", f"v{AV}", 96, f"v{AV}")
                e.valu("v_add_u32", f"v{AV}", f"s{S_DELTA}", f"v{AV}")
        else:
            pf.pop(0)()
        if yd:
            yd.pop(0)()
    assert e.ldsq == PREF_TAGS, e.ldsq
    e.salu(f"s_add_u32 s{S_J}, s{S_J}, 1")
    e.salu(f"s_cmp_lt_u32 s{S_J}, {NSTEP}")
    e.salu("s_cbranch_scc1 L_top")

    e.lds_drain()
    stamp(e, 2)
    e.nop(8)
    TA, TB, TC, TI, TG = 232, 233, 234, 235, 236
    e.valu("v_mbcnt_lo_u32_b32", f"v{TA}", -1, 0)
    e.valu("v_mbcnt_hi_u32_b32", f"v{TA}", -1, f"v{TA}")
    e.valu("v_and_b32", f"v{TI}", 15, f"v{TA}")
    e.valu("v_lshrrev_b32", f"v{TG}", 4, f"v{TA}")
    e.valu("v_add_u32", f"v{TA}", f"s{S_R0}", f"v{TI}")
    e.valu("v_mul_u32_u24", f"v{TA}", 384, f"v{TA}")
    e.valu("v_and_b32", f"v{TB}", 1, f"v{TG}")
    e.valu("v_lshlrev_b32", f"v{TB}", 5, f"v{TB}")
    e.valu("v_add_u32", f"v{TA}", f"v{TA}", f"v{TB}")
    e.valu("v_lshrrev_b32", f"v{TB}", 1, f"v{TG}")
    e.valu("v_lshlrev_b32", f"v{TB}", 4, f"v{TB}")
    e.valu("v_add_u32", f"v{AK}", f"v{TA}", f"v{TB}")
    for t in range(3):
        lane_reduce(e, L[t], T0, "v_add_f32")
    for t in range(3):
        e.valu("v_rcp_f32", f"v{L[t]}", f"v{L[t]}", trans=True)
    k = 0
    for t in range(3):
        e.salu(f"s_mov_b32 s46, {t * 6144}")
        for dp in range(6):
            x, y = O(t, 2 * dp), O(t, 2 * dp + 1)
            for r in range(4):
                e.valu("v_mul_f32", f"v{x + r}", f"v{x + r}", f"v{L[t]}")
            for r in range(4):
                e.valu("v_mul_f32", f"v{y + r}", f"v{y + r}", f"v{L[t]}")
            d = 208 + 4 * (k % 6)
            k += 1
            e.valu("v_cvt_pk_bf16_f32", f"v{d}", f"v{x}", f"v{x + 1}")
            e.valu("v_cvt_pk_bf16_f32", f"v{d + 1}", f"v{x + 2}", f"v{x + 3}")
            e.valu("v_cvt_pk_bf16_f32", f"v{d + 2}", f"v{y}", f"v{y + 1}")
            e.valu("v_cvt_pk_bf16_f32", f"v{d + 3}", f"v{y + 2}", f"v{y + 3}")
            e.permswap("v_permlane16_swap_b32", d, d + 2)
            e.permswap("v_permlane16_swap_b32", d + 1, d + 3)
            e.ins(f"buffer_store_dwordx4 {vr(d, 4)}, v{AK}, {srd(SO)}, s46 offen offset:{dp * 64}", "vstore",
                  rd=rng(d, 4) | {AK}, data=rng(d, 4))
    if DIAG:
        e.ins("s_waitcnt vmcnt(0)", "wait")
        e.salu("s_memrealtime s[54:55]")
        e.salu("s_memtime s[58:59]")
        e.salu("s_getreg_b32 s62, hwreg(HW_REG_HW_ID)")
        e.salu("s_getreg_b32 s63, hwreg(HW_REG_XCC_ID)")
        e.ins("s_waitcnt lgkmcnt(0)", "wait")
        e.salu("s_mov_b32 s64, s60")
        e.salu("s_and_b32 s65, s61, 0xffff")
        e.salu("s_mov_b32 s66, 0x100000")
        e.salu("s_mov_b32 s67, 0x20000")
        e.salu("s_lshl_b32 s46, s2, 2")
        e.salu("s_add_u32 s46, s46, s44")
        e.salu("s_lshl_b32 s46, s46, 5")
        for k, sr in enumerate((48, 50, 52, 54, 56, 58, 62, 63)):
            e.valu("v_mov_b32", f"v{k}", f"s{sr}")
        e.valu("v_mov_b32", "v8", 0)
        e.salu("s_mov_b64 exec, 1")
        e.ins("buffer_store_dwordx4 v[0:3], v8, s[64:67], s46 offen offset:0", "vstore", rd={0, 1, 2, 3, 8})
        e.ins("buffer_store_dwordx4 v[4:7], v8, s[64:67], s46 offen offset:16", "vstore", rd={4, 5, 6, 7, 8})
    e.label("L_end")
    e.raw("    s_endpgm")

    e.label("L_rare")
    e.ldsq = []
    e.ins("s_waitcnt lgkmcnt(0)", "wait")
    e.nop(4)
    e.label("L_slow", keep_hist=True)
    for it in prefetch_items(e):
        it()
    qk(e, False)
    MX = [232, 233, 234]
    Y = [236, 237, 238]
    for t in range(3):
        a, b = SA[t], SB[t]
        e.valu("v_max3_f32", f"v{MX[t]}", f"v{a}", f"v{a + 1}", f"v{a + 2}")
        e.valu("v_max3_f32", f"v{MX[t]}", f"v{MX[t]}", f"v{a + 3}", f"v{b}")
        e.valu("v_max3_f32", f"v{MX[t]}", f"v{MX[t]}", f"v{b + 1}", f"v{b + 2}")
        e.valu("v_max_f32", f"v{MX[t]}", f"v{MX[t]}", f"v{b + 3}")
    for t in range(3):
        lane_reduce(e, MX[t], Y[t], "v_max_f32")
    for t in range(3):
        e.valu("v_mul_f32", f"v{MX[t]}", f"s{S_C}", f"v{MX[t]}")
        e.valu("v_ceil_f32", f"v{MX[t]}", f"v{MX[t]}")
        e.valu("v_max_f32", f"v{MX[t]}", f"v{MX[t]}", f"v{M[t]}")
        e.valu("v_sub_f32", f"v{Y[t]}", f"v{M[t]}", f"v{MX[t]}")
        e.valu("v_exp_f32", f"v{Y[t]}", f"v{Y[t]}", trans=True)
        e.valu("v_mov_b32", f"v{M[t]}", f"v{MX[t]}")
        e.valu("v_mul_f32", f"v{L[t]}", f"v{L[t]}", f"v{Y[t]}")
    e.salu(f"s_cmp_eq_u32 s{S_J}, 0")
    e.salu("s_cbranch_scc1 L_norescale")
    for t in range(3):
        for r in range(48):
            e.valu("v_mul_f32", f"v{t * 48 + r}", f"v{t * 48 + r}", f"v{Y[t]}")
    e.label("L_norescale", keep_hist=True)
    for op in softmax_a_ops(e):
        op()
    for op in softmax_b_ops(e):
        op()
    for n in range(3):
        vread(e, BUF[n], n)
    assert e.ldsq == q_after, (e.ldsq, q_after)
    e.nop(4)
    e.salu("s_branch L_after")

    e.raw('.section .rodata,"a"')
    e.raw(".p2align 6")
    e.raw(f".amdhsa_kernel {NAME}_kernel")
    e.raw("  .amdhsa_next_free_vgpr 256")
    e.raw("  .amdhsa_next_free_sgpr 72")
    e.raw("  .amdhsa_accum_offset 256")
    e.raw("  .amdhsa_group_segment_fixed_size 0")
    e.raw("  .amdhsa_kernarg_size 48")
    e.raw("  .amdhsa_user_sgpr_count 2")
    e.raw("  .amdhsa_user_sgpr_kernarg_segment_ptr 1")
    e.raw("  .amdhsa_system_sgpr_workgroup_id_x 1")
    e.raw(".end_amdhsa_kernel")
    return e.text()


if __name__ == "__main__":
    pos = [a for a in sys.argv[1:] if not a.startswith("--")]
    out = pos[0] if pos else f"cdna_kernels/{NAME}.s"
    open(out, "w").write(gen())
    print("wrote", out)
```
